```python
import torch

def _softmax(x, axis=-1):
    return torch.softmax(x, dim=axis)
def _gelu(x):
    return torch.nn.functional.gelu(x, approximate="tanh")
def _silu(x):
    return torch.nn.functional.silu(x)
def _sigmoid(x):
    return torch.sigmoid(x)
def _layernorm(x, axis=-1, eps=1e-5):
    m = x.mean(dim=axis, keepdim=True)
    v = x.var(dim=axis, keepdim=True, unbiased=False)
    return (x - m) / torch.sqrt(v + eps)
def _scatter_add(tgt, idx, src, axis=0):
    return tgt.clone().index_add_(axis, idx, src)
def _segment_sum(src, seg, n):
    out = torch.zeros((n,) + src.shape[1:], dtype=src.dtype)
    return out.index_add_(0, seg, src)
def _pad(x, pw):
    flat = tuple(v for pair in reversed(pw) for v in pair)
    return torch.nn.functional.pad(x, flat)

kernel_name = 'parallel_sum__linear_kernel_hedgehog__moe_arch_mod__prompt'

def setup_inputs():

    _w = (lambda a: (lambda t: t.to(torch.bfloat16) if t.is_floating_point() else t)(torch.as_tensor(a)))
    def _A_setup():
        B, S, D, H = 1, 2048, 576, 32
        Dh = D // H
        return {
            "x": _w((lambda *s: torch.randn(*s, dtype=torch.bfloat16) * 0.05)(B, S, D)),
            "wqkv": _w((lambda *s: torch.randn(*s, dtype=torch.bfloat16) * 0.4)(D, 3 * D)),
            "w_phi": _w((lambda *s: torch.randn(*s, dtype=torch.bfloat16) * 0.4)(H, Dh, Dh) * (Dh ** -0.5)),
            "wo": _w((lambda *s: torch.randn(*s, dtype=torch.bfloat16) * 0.1)(D, D)),
        }
    _A_in = _A_setup()

    def _B_setup():
        B, S, D, F, C = 1, 2048, 576, 4608, 1
        return {
            "x": _w((lambda *s: torch.randn(*s, dtype=torch.bfloat16) * 0.05)(B, S, D)),
            "w_r": _w((lambda *s: torch.randn(*s, dtype=torch.bfloat16) * 0.05)(D)),
            "w_gate": _w((lambda *s: torch.randn(*s, dtype=torch.bfloat16) * 0.05)(D, F)),
            "w_up": _w((lambda *s: torch.randn(*s, dtype=torch.bfloat16) * 0.05)(D, F)),
            "w_down": _w((lambda *s: torch.randn(*s, dtype=torch.bfloat16) * 0.05)(F, D)),
        }
    _B_in = _B_setup()

    return {
        "A_x": _A_in["x"],
        "A_wqkv": _A_in["wqkv"],
        "A_w_phi": _A_in["w_phi"],
        "A_wo": _A_in["wo"],
        "B_x": _B_in["x"],
        "B_w_r": _B_in["w_r"],
        "B_w_gate": _B_in["w_gate"],
        "B_w_up": _B_in["w_up"],
        "B_w_down": _B_in["w_down"],
    }

def reference(A_x, A_wqkv, A_w_phi, A_wo, B_x, B_w_r, B_w_gate, B_w_up, B_w_down):
    def _A_ref(x, wqkv, w_phi, wo):
        B, S, D = x.shape
        H = 32; Dh = D // H
        qkv = (lambda x, *d: x.permute(*d))((x @ wqkv).reshape(B, S, 3, H, Dh), 2, 0, 3, 1, 4)
        q, k, v = qkv[0], qkv[1], qkv[2]
        pq = torch.einsum("bhsd,hdf->bhsf", q, w_phi)
        pk = torch.einsum("bhsd,hdf->bhsf", k, w_phi)
        phi_q = torch.concatenate([_softmax(pq, axis=-1), _softmax(-pq, axis=-1)], axis=-1)
        phi_k = torch.concatenate([_softmax(pk, axis=-1), _softmax(-pk, axis=-1)], axis=-1)
        kv = torch.einsum("bhsf,bhsd->bhfd", phi_k, v)
        z  = torch.einsum("bhsf->bhf", phi_k)
        num = torch.einsum("bhqf,bhfd->bhqd", phi_q, kv)
        den = torch.einsum("bhqf,bhf->bhq", phi_q, z)[..., None] + 1e-6
        o = num / den
        return (lambda x, *d: x.permute(*d))(o, 0, 2, 1, 3).reshape(B, S, D) @ wo

    def _B_ref(x, w_r, w_gate, w_up, w_down):
        B, S, D = x.shape
        C = 1
        r = x @ w_r
        idx = torch.argsort(-r, axis=-1)[:, :C]
        idx_e = (lambda x, n, axis: torch.repeat_interleave(x, n, dim=axis))(idx.reshape(B, C, 1), D, axis=2)
        x_sel = (lambda x, i, axis: torch.take_along_dim(x, i, dim=axis))(x, idx_e, axis=1)
        g = _silu(x_sel @ w_gate)
        u = x_sel @ w_up
        y = (g * u) @ w_down
        r_sel = _sigmoid((lambda x, i, axis: torch.take_along_dim(x, i, dim=axis))(r, idx, axis=1))
        y = y * r_sel.reshape(B, C, 1)
        b_off = (torch.arange(B) * S).reshape(B, 1)
        flat_idx = (idx + b_off).reshape(B * C)
        zero = (x * 0.0).reshape(B * S, D)
        upd = _scatter_add(zero, flat_idx, y.reshape(B * C, D), axis=0)
        return x + upd.reshape(B, S, D)

    x = A_x
    xn = _layernorm(x, axis=-1)
    return x + _A_ref(xn, A_wqkv, A_w_phi, A_wo) + _B_ref(xn, B_w_r, B_w_gate, B_w_up, B_w_down)
```

```python
import re

TRANS = ("v_exp_f32", "v_log_f32", "v_rcp_f32", "v_rsq_f32", "v_sqrt_f32", "v_sin_f32", "v_cos_f32", "v_rcp_iflag_f32")

def _regs(tok):
    tok = tok.strip()
    neg = tok.lstrip("-")
    if neg.startswith("abs(") and neg.endswith(")"): neg = neg[4:-1]
    if neg.startswith("|") and neg.endswith("|"): neg = neg[1:-1]
    m = re.fullmatch(r"([vas])(\d+)", neg)
    if m: return {(m.group(1), int(m.group(2)))}
    m = re.fullmatch(r"([vas])\[(\d+):(\d+)\]", neg)
    if m: return {(m.group(1), i) for i in range(int(m.group(2)), int(m.group(3)) + 1)}
    if neg in ("vcc", "vcc_lo", "vcc_hi"): return {("vcc", 0)}
    if neg in ("exec", "exec_lo", "exec_hi"): return {("exec", 0)}
    if neg == "m0": return {("m0", 0)}
    return set()

class Ins:
    __slots__ = ("text", "op", "dst", "src", "kind", "passes", "srcC", "is_dpp", "nstates", "label")
    def __init__(self, text):
        self.text = text
        self.label = text.endswith(":")
        self.dst = set(); self.src = set(); self.srcC = set(); self.passes = 0; self.is_dpp = False
        self.nstates = 1
        if self.label or text.startswith(".") or text.startswith(";"):
            self.op = ""; self.kind = "none"; self.nstates = 0; return
        parts = text.split(None, 1)
        self.op = op = parts[0]
        rest = parts[1] if len(parts) > 1 else ""
        ops = [t.strip() for t in re.split(r",(?![^\[]*\])", rest)] if rest else []
        mods = ""
        if ops:
            last = ops[-1].split(None, 1)
            ops[-1] = last[0]
            mods = last[1] if len(last) > 1 else ""
        self.is_dpp = "dpp" in op or "quad_perm" in mods or "row_" in mods
        R = [_regs(t) for t in ops]
        def U(xs):
            o = set()
            for x in xs: o |= x
            return o
        if op == "s_nop":
            self.kind = "nop"; self.nstates = int(ops[0], 0) + 1
        elif op.startswith("v_mfma"):
            self.kind = "mfma"; self.dst = R[0]; self.src = U(R[1:]); self.srcC = R[3] if len(R) > 3 else set()
            self.passes = 8 if "32x32" in op else 4
        elif op.startswith("v_cmp"):
            self.kind = "valu"; self.dst = R[0]; self.src = U(R[1:])
        elif op in ("v_readfirstlane_b32", "v_readlane_b32"):
            self.kind = "valu"; self.dst = R[0]; self.src = U(R[1:])
        elif op.startswith("v_permlane") and "swap" in op:
            self.kind = "valu"; self.dst = U(R[:2]); self.src = U(R[:2])
        elif op.startswith("v_"):
            self.kind = "valu"
            if "_co_" in op and len(R) >= 2 and (ops[1] == "vcc" or ops[1].startswith("s[")):
                self.dst = R[0] | R[1]; self.src = U(R[2:])
            else:
                self.dst = R[0]; self.src = U(R[1:])
            if op.startswith(("v_fmac", "v_dot2c", "v_writelane", "v_pk_fmac")) : self.src |= R[0]
            if op.startswith("v_cndmask") and len(ops) == 3: self.src |= {("vcc", 0)}
        elif op.startswith(("global_load_lds", "buffer_load")) and ("lds" in op or " lds" in " " + mods):
            self.kind = "vmem"; self.src = U(R) | {("m0", 0)}
        elif op.startswith(("global_load", "buffer_load")):
            self.kind = "vmem"; self.dst = R[0]; self.src = U(R[1:])
            if "d16" in op: self.src |= R[0]
        elif op.startswith(("global_store", "buffer_store")):
            self.kind = "vmem_store"; self.src = U(R)
        elif op.startswith(("global_atomic", "buffer_atomic")):
            self.kind = "vmem_store"; self.src = U(R)
        elif op.startswith("ds_read") or op.startswith("ds_bpermute") or op.startswith("ds_swizzle"):
            self.kind = "ds"; self.dst = R[0]; self.src = U(R[1:])
        elif op.startswith("ds_"):
            self.kind = "ds"; self.src = U(R)
        elif op.startswith(("s_cmp", "s_bitcmp")):
            self.kind = "salu"; self.src = U(R)
        elif op.startswith(("s_waitcnt", "s_barrier", "s_endpgm", "s_branch", "s_cbranch", "s_sleep", "s_setprio")):
            self.kind = "ctl"
        elif op.startswith(("s_load", "s_memtime", "s_memrealtime")):
            self.kind = "smem"; self.dst = R[0]; self.src = U(R[1:])
        elif op.startswith("s_"):
            self.kind = "salu"; self.dst = R[0]; self.src = U(R[1:])
            if "saveexec" in op: self.dst |= {("exec", 0)}; self.src |= {("exec", 0)}
        else:
            raise ValueError("unknown instruction: " + text)

def need_states(p, c):
    n = 0
    pv = {r for r in p.dst if r[0] in "va"}
    ps = {r for r in p.dst if r[0] in ("s", "vcc")}
    if p.kind == "valu":
        if c.kind == "mfma" and pv & c.src: n = max(n, 2)
        if c.kind == "valu":
            if c.is_dpp and pv & c.src: n = max(n, 2)
            if c.op.startswith("v_permlane") and pv & c.src: n = max(n, 2)
            if c.op in ("v_readfirstlane_b32", "v_readlane_b32") and pv & c.src: n = max(n, 1)
            if ps & c.src: n = max(n, 2)
            if c.op in ("v_readlane_b32", "v_writelane_b32") and ps & c.src: n = max(n, 4)
            if p.op.startswith(TRANS) and not c.op.startswith(TRANS) and pv & c.src: n = max(n, 1)
            if ("sdwa" in p.text or "op_sel" in p.text) and not p.op.startswith("v_pk_") and pv & (c.src | c.dst): n = max(n, 1)
        if c.kind in ("vmem", "vmem_store") and ps & c.src: n = max(n, 5)
        if c.kind == "salu" and ps & c.src: n = max(n, 1)
    if p.kind == "valu" and p.op.startswith("v_dot"):
        if c.op != p.op:
            if pv & (c.src | c.dst): n = max(n, 3)
        else:
            ops = [t.strip() for t in c.text.split(None, 1)[1].split(",")]
            ab = set()
            for t in ops[1:3]: ab |= _regs(t.split()[0])
            if pv & ab: n = max(n, 3)
    if p.kind == "mfma":
        P = p.passes
        if c.kind == "mfma":
            if pv & c.srcC:
                same = (c.srcC == p.dst and c.passes == P)
                if not same: n = max(n, 6 if P == 4 else 10)
            ab = c.src - c.srcC if c.srcC != c.src else c.src
            if pv & (c.src - c.srcC): n = max(n, 8 if P == 4 else 12)
            if pv & c.dst and c.dst != p.dst: n = max(n, 8 if P == 4 else 12)
        elif c.kind == "valu":
            if pv & (c.src | c.dst): n = max(n, 8 if P == 4 else 12)
            if p.srcC & c.dst: n = max(n, 3 if P == 4 else 7)
        elif c.kind in ("vmem", "vmem_store", "ds"):
            if pv & (c.src | c.dst): n = max(n, 8 if P == 4 else 12)
    if p.kind == "vmem_store" and ("x4" in p.op or "x3" in p.op):
        data = {r for r in p.src if r[0] in "va"}
        if data & c.dst: n = max(n, 2 if c.kind == "valu" else 1)
    if p.kind == "salu" and ("m0", 0) in p.dst and ("m0", 0) in c.src: n = max(n, 1)
    return n

class Asm:
    def __init__(self):
        self.lines = []
    def __call__(self, text):
        for t in text.split("\n"):
            t = t.strip()
            if t: self.lines.append(t)
    def finalize(self, window=24):
        ins = [Ins(t) for t in self.lines]
        out = []
        nins = 0
        for c in ins:
            if c.kind != "none":
                need = 0; dist = 0
                for p in reversed(out[-3 * window:]):
                    if p.kind == "none": continue
                    req = need_states(p, c)
                    if req > dist: need = max(need, req - dist)
                    dist += p.nstates
                    if dist >= 20: break
                while need > 0:
                    k = min(need, 16)
                    out.append(Ins(f"s_nop {k-1}")); need -= k; nins += 1
            out.append(c)
        self.nops_inserted = nins
        return "\n".join(("" if (i.label or i.text.startswith(".")) else "    ") + i.text for i in out) + "\n"

KD = """.section .rodata,"a"
.p2align 6
.amdhsa_kernel {name}
  .amdhsa_next_free_vgpr {vgpr}
  .amdhsa_next_free_sgpr {sgpr}
  .amdhsa_accum_offset {acc}
  .amdhsa_group_segment_fixed_size 0
  .amdhsa_kernarg_size 96
  .amdhsa_user_sgpr_count 2
  .amdhsa_user_sgpr_kernarg_segment_ptr 1
  .amdhsa_system_sgpr_workgroup_id_x 1
  .amdhsa_float_denorm_mode_32 3
.end_amdhsa_kernel
"""
```

```python
from asmlib import *
from layout import *

def prologue(a, nwg, end):
    a(f"s_cmp_ge_u32 s2, {nwg}")
    a(f"s_cbranch_scc1 {end}")
    a("s_load_dwordx16 s[4:19], s[0:1], 0")
    a("s_load_dwordx8 s[20:27], s[0:1], 64")
    a("v_lshrrev_b32 v2, 6, v0")
    a("v_and_b32 v1, 63, v0")
    a("v_readfirstlane_b32 s28, v2")

def base64(a, dst, ptr, off):
    d0 = int(dst[2:-1].split(":")[0]); p0 = int(ptr[2:-1].split(":")[0])
    a(f"s_add_u32 s{d0}, s{p0}, {off}")
    a(f"s_addc_u32 s{d0+1}, s{p0+1}, 0")

def reduce32_add(a, regs, tmps):
    for pat in ("quad_perm:[1,0,3,2]", "quad_perm:[2,3,0,1]", "row_half_mirror", "row_mirror"):
        for r in regs:
            a(f"v_add_f32_dpp {r}, {r}, {r} {pat} row_mask:0xf bank_mask:0xf")
    for r, t in zip(regs, tmps): a(f"v_mov_b32 {t}, {r}")
    for r, t in zip(regs, tmps): a(f"v_permlane16_swap_b32 {r}, {t}")
    for r, t in zip(regs, tmps): a(f"v_add_f32 {r}, {r}, {t}")

def reduce64_max_u32(a, r, t):
    for pat in ("quad_perm:[1,0,3,2]", "quad_perm:[2,3,0,1]", "row_half_mirror", "row_mirror"):
        a(f"v_max_u32_dpp {r}, {r}, {r} {pat} row_mask:0xf bank_mask:0xf")
    a(f"v_mov_b32 {t}, {r}"); a(f"v_permlane16_swap_b32 {r}, {t}"); a(f"v_max_u32 {r}, {r}, {t}")
    a(f"v_mov_b32 {t}, {r}"); a(f"v_permlane32_swap_b32 {r}, {t}"); a(f"v_max_u32 {r}, {r}, {t}")

def set_exec(a, lo, hi):
    a(f"s_mov_b32 exec_lo, {lo:#x}" if isinstance(lo, int) else f"s_mov_b32 exec_lo, {lo}")
    a(f"s_mov_b32 exec_hi, {hi:#x}" if isinstance(hi, int) else f"s_mov_b32 exec_hi, {hi}")

def full_exec(a):
    a("s_mov_b64 exec, -1")
```

```python
from common import *

N_LN, N_W, N_WO = 256, 216, 48
K0_WGS = N_LN + N_W + N_WO
K0_LDS = 16384

def ln_part(a):
    a("v_and_b32 v2, 31, v1")
    a("v_lshrrev_b32 v3, 5, v1")
    a("s_lshl_b32 s29, s2, 3"); a("s_lshl_b32 s30, s28, 1"); a("s_add_u32 s29, s29, s30")
    a("v_add_u32 v3, s29, v3")
    a("v_mul_u32_u24 v4, 1152, v3")
    a("v_lshlrev_b32 v5, 4, v2")
    a("v_add_u32 v4, v4, v5")
    for r in list(range(16, 20)) + list(range(28, 32)): a(f"v_mov_b32 v{r}, 0")
    a("s_waitcnt lgkmcnt(0)")
    a(f"global_load_dwordx4 v[8:11], v4, {P_X}")
    a(f"global_load_dwordx4 v[12:15], v4, {P_X} offset:512")
    a(f"global_load_dwordx4 v[20:23], v5, {P_WR}")
    a(f"global_load_dwordx4 v[24:27], v5, {P_WR} offset:512")
    set_exec(a, 0xff, 0xff)
    a(f"global_load_dwordx4 v[16:19], v4, {P_X} offset:1024")
    a(f"global_load_dwordx4 v[28:31], v5, {P_WR} offset:1024")
    full_exec(a)
    a("v_lshrrev_b32 v6, 5, v3"); a("v_mul_u32_u24 v6, 36864, v6")
    a("v_lshrrev_b32 v7, 1, v2"); a("v_lshlrev_b32 v7, 10, v7")
    a("v_and_b32 v56, 1, v2"); a("v_lshlrev_b32 v56, 5, v56")
    a("v_and_b32 v57, 31, v3"); a("v_add_u32 v56, v56, v57"); a("v_lshlrev_b32 v56, 4, v56")
    a("v_add3_u32 v6, v6, v7, v56")
    a(f"v_add_u32 v6, {XF}, v6")
    a("v_add_u32 v7, 16384, v6"); a("v_add_u32 v56, 32768, v6")
    a("s_waitcnt vmcnt(0)")
    for n in range(12):
        a(f"v_lshlrev_b32 v{32+2*n}, 16, v{8+n}")
        a(f"v_and_b32 v{33+2*n}, 0xffff0000, v{8+n}")
    a("v_pk_add_f32 v[58:59], v[32:33], v[34:35]")
    a("v_pk_mul_f32 v[60:61], v[32:33], v[32:33]")
    for n in range(1, 12):
        if n > 1: a(f"v_pk_add_f32 v[58:59], v[58:59], v[{32+2*n}:{33+2*n}]")
        a(f"v_pk_fma_f32 v[60:61], v[{32+2*n}:{33+2*n}], v[{32+2*n}:{33+2*n}], v[60:61]")
    a("v_add_f32 v58, v58, v59"); a("v_add_f32 v60, v60, v61")
    reduce32_add(a, ["v58", "v60"], ["v59", "v61"])
    a("v_mul_f32 v58, 0x3ae38e39, v58")
    a("v_mul_f32 v60, 0x3ae38e39, v60")
    a("v_fma_f32 v60, -v58, v58, v60")
    a("v_max_f32 v60, 0, v60")
    a("v_cvt_pk_bf16_f32 v59, v58, v60")
    a("v_lshlrev_b32 v58, 16, v59")
    a("v_and_b32 v60, 0xffff0000, v59")
    a("v_add_f32 v60, 0x3727c5ac, v60")
    a("v_cvt_pk_bf16_f32 v60, v60, v60"); a("v_and_b32 v60, 0xffff0000, v60")
    a("v_sqrt_f32 v60, v60")
    a("v_cvt_pk_bf16_f32 v60, v60, v60"); a("v_and_b32 v60, 0xffff0000, v60")
    a("v_rcp_f32 v60, v60")
    a("v_mul_f32 v62, v58, v60"); a("v_sub_f32 v62, 0, v62")
    for n in range(12):
        a(f"v_pk_fma_f32 v[{32+2*n}:{33+2*n}], v[{32+2*n}:{33+2*n}], v[60:61], v[62:63] op_sel_hi:[1,0,0]")
    for n in range(12):
        a(f"v_cvt_pk_bf16_f32 v{8+n}, v{32+2*n}, v{33+2*n}")
    a(f"global_store_dwordx4 v6, v[8:11], {P_WS}")
    a(f"global_store_dwordx4 v7, v[12:15], {P_WS}")
    set_exec(a, 0xff, 0xff)
    a(f"global_store_dwordx4 v56, v[16:19], {P_WS}")
    full_exec(a)
    a("v_mov_b32 v63, 0")
    for n in range(12): a(f"v_dot2c_f32_bf16 v63, v{8+n}, v{20+n}")
    reduce32_add(a, ["v63"], ["v59"])
    a("v_cvt_pk_bf16_f32 v63, v63, v63")
    a("v_ashrrev_i32 v59, 31, v63"); a("v_or_b32 v59, 0x80000000, v59")
    a("v_xor_b32 v63, v63, v59"); a("v_and_b32 v63, 0xffff0000, v63")
    a("v_sub_u32 v59, 2047, v3"); a("v_or_b32 v63, v63, v59")
    a("v_mov_b32 v59, v63"); a("v_permlane32_swap_b32 v63, v59"); a("v_max_u32 v63, v63, v59")
    a("s_lshl_b32 s29, s2, 2"); a("s_add_u32 s29, s29, s28"); a("s_lshl_b32 s29, s29, 2")
    a(f"s_add_u32 s29, s29, {CAND}"); a("v_mov_b32 v59, s29")
    a("v_lshlrev_b32 v57, 3, v3"); a(f"v_add_u32 v57, {STATS}, v57")
    a("v_mov_b32 v61, v60"); a("v_mov_b32 v60, v58")
    set_exec(a, 1, 1)
    a(f"global_store_dwordx2 v57, v[60:61], {P_WS}")
    set_exec(a, 1, 0)
    a(f"global_store_dword v59, v63, {P_WS}")
    full_exec(a)

def w_part(a):
    a(f"s_sub_u32 s29, s2, {N_LN}")
    a(f"s_mul_hi_u32 s30, s29, {magic(12)}")
    a("s_mul_i32 s31, s30, 12"); a("s_sub_u32 s31, s29, s31")
    a("s_lshr_b32 s32, s31, 2")
    a("s_and_b32 s31, s31, 3"); a("s_lshl_b32 s31, s31, 2"); a("s_add_u32 s31, s31, s28")
    a("v_and_b32 v2, 31, v1"); a("v_lshrrev_b32 v3, 5, v1")
    a("v_lshrrev_b32 v4, 4, v2"); a("v_lshlrev_b32 v4, 4, v4")
    a("v_bfe_u32 v5, v2, 2, 1"); a("v_lshlrev_b32 v5, 3, v5")
    a("v_bfe_u32 v6, v2, 3, 1"); a("v_lshlrev_b32 v6, 2, v6")
    a("v_and_b32 v7, 3, v2"); a("v_add3_u32 v4, v4, v5, v6"); a("v_add_u32 v4, v4, v7")
    a("s_lshl_b32 s33, s30, 5"); a("v_add_u32 v4, s33, v4")
    a("v_mul_u32_u24 v4, 3456, v4")
    a("s_mul_i32 s33, s32, 1152"); a("s_mul_i32 s34, s31, 72"); a("s_add_u32 s33, s33, s34")
    a("v_lshlrev_b32 v5, 4, v3"); a("v_add3_u32 v4, v4, v5, s33")
    a("s_waitcnt lgkmcnt(0)")
    a("s_mov_b32 s36, s6"); a("s_mov_b32 s37, s7"); a(f"s_mov_b32 s38, {576*3456}"); a("s_mov_b32 s39, 0x20000")
    for hp in range(2):
        for st in range(2):
            r = 8 + 8*hp + 4*st
            a(f"buffer_load_dwordx4 v[{r}:{r+3}], v4, s[36:39], 0 offen offset:{36*hp + 32*st}")
    a("s_mul_i32 s33, s28, 3072")
    for r in range(24, 28): a(f"v_mov_b32 v{r}, 0")
    a("v_lshlrev_b32 v5, 4, v1"); a("v_add_u32 v5, s33, v5")
    for n in range(3): a(f"ds_write_b128 v5, v[24:27] offset:{1024*n}")
    a("v_cmp_gt_u32 vcc, 18, v1"); a("v_subrev_u32 v6, 18, v1"); a("v_cndmask_b32 v6, v6, v1, vcc")
    a("v_mov_b32 v28, 0"); a("v_mov_b32 v29, 1344"); a("v_cndmask_b32 v7, v29, v28, vcc")
    a("v_mul_u32_u24 v28, 40, v6"); a("v_add3_u32 v7, v7, v28, s33")
    a("s_cmp_eq_u32 s32, 2"); a("s_cbranch_scc1 L_k0_ident")
    a("v_mul_u32_u24 v28, 36, v1"); a("s_mul_i32 s34, s31, 1296"); a("v_add_u32 v28, s34, v28")
    set_exec(a, 0xffffffff, 0xf)
    a(f"global_load_dwordx4 v[32:35], v28, {P_PHI}")
    a(f"global_load_dwordx4 v[36:39], v28, {P_PHI} offset:16")
    a(f"global_load_dword v40, v28, {P_PHI} offset:32")
    a("s_waitcnt vmcnt(0)")
    for n in range(4): a(f"ds_write_b64 v7, v[{32+2*n}:{33+2*n}] offset:{8*n}")
    a("ds_write_b32 v7, v40 offset:32")
    full_exec(a)
    a("s_branch L_k0_phi_done")
    a("L_k0_ident:")
    a("v_lshlrev_b32 v28, 1, v6"); a("v_add_u32 v7, v7, v28"); a("v_mov_b32 v28, 0x3f80")
    set_exec(a, 0xffffffff, 0xf)
    a("ds_write_b16 v7, v28")
    full_exec(a)
    a("L_k0_phi_done:")
    a("v_lshrrev_b32 v5, 5, v1"); a("v_lshlrev_b32 v5, 3, v5"); a("v_bfe_u32 v6, v1, 2, 2"); a("v_add_u32 v5, v5, v6")
    a("v_mul_u32_u24 v5, 40, v5")
    a("v_bfe_u32 v6, v1, 4, 1"); a("v_lshlrev_b32 v6, 5, v6"); a("v_and_b32 v7, 3, v1"); a("v_lshlrev_b32 v7, 3, v7")
    a("v_add3_u32 v5, v5, v6, v7"); a("v_add_u32 v5, s33, v5")
    for hp in range(2):
        for st in range(2):
            for rd in range(2):
                r = 32 + 8*hp + 4*st + 2*rd
                a(f"ds_read_b64_tr_b16 v[{r}:{r+1}], v5 offset:{1344*hp + 640*st + 160*rd}")
    a("v_and_b32 v2, 31, v1"); a("s_mul_i32 s34, s32, 18"); a("v_add_u32 v6, s34, v2")
    a("v_lshrrev_b32 v7, 4, v6")
    a("v_and_b32 v6, 15, v6")
    a("v_lshrrev_b32 v28, 2, v6"); a("v_lshlrev_b32 v28, 3, v28"); a("v_and_b32 v6, 3, v6"); a("v_add_u32 v6, v6, v28")
    a("v_lshrrev_b32 v28, 5, v1")
    a("v_cmp_eq_u32 vcc, 3, v7"); a("v_lshlrev_b32 v29, 5, v28"); a("v_lshlrev_b32 v28, 4, v28"); a("v_cndmask_b32 v28, v29, v28, vcc")
    a("v_add_u32 v6, v6, v28"); a("v_lshlrev_b32 v6, 4, v6"); a("v_lshlrev_b32 v7, 10, v7"); a("v_add_u32 v6, v6, v7")
    a(f"s_mul_i32 s34, s31, {WFP}"); a("s_mul_i32 s35, s30, 7168"); a("s_add_u32 s34, s34, s35"); a(f"s_add_u32 s34, s34, {WF}")
    a("v_add_u32 v6, s34, v6")
    a("s_waitcnt vmcnt(0) lgkmcnt(0)")
    for hp in range(2):
        d = 64 + 16*hp
        a(f"v_mfma_f32_32x32x16_bf16 v[{d}:{d+15}], v[{8+8*hp}:{11+8*hp}], v[{32+8*hp}:{35+8*hp}], 0")
        a(f"v_mfma_f32_32x32x16_bf16 v[{d}:{d+15}], v[{12+8*hp}:{15+8*hp}], v[{36+8*hp}:{39+8*hp}], v[{d}:{d+15}]")
    set_exec(a, 0x3ffff, 0x3ffff)
    for hp in range(2):
        d = 64 + 16*hp
        for aa in range(2):
            r = 48 + 4*((2*hp + aa) % 4)
            for n in range(4):
                a(f"v_cvt_pk_bf16_f32 v{r+n}, v{d+8*aa+2*n}, v{d+8*aa+2*n+1}")
            a(f"global_store_dwordx4 v6, v[{r}:{r+3}], {P_WS} offset:{3584*aa + 64*hp}")
    full_exec(a)

def wo_part(a):
    a(f"s_sub_u32 s29, s2, {N_LN + N_W}")
    a("s_lshr_b32 s30, s29, 1")
    a("s_and_b32 s31, s29, 1"); a("s_lshl_b32 s31, s31, 2"); a("s_add_u32 s31, s31, s28")
    a("s_lshl_b32 s33, s28, 12")
    a("s_mul_i32 s34, s30, 27648"); a("s_mul_i32 s35, s31, 144"); a("s_add_u32 s34, s34, s35")
    for n in range(4):
        a(f"v_add_u32 v2, {64*n}, v1")
        a(f"s_mov_b32 s35, {magic(9)}"); a("v_mul_hi_u32 v3, v2, s35")
        a("v_mul_u32_u24 v4, 9, v3"); a("v_sub_u32 v4, v2, v4")
        a("v_mul_u32_u24 v3, 1152, v3"); a("v_lshlrev_b32 v4, 4, v4")
        a(f"v_add3_u32 v{8+n}, v3, v4, s34")
    for r in range(16, 20): a(f"v_mov_b32 v{r}, 0")
    a("v_lshlrev_b32 v2, 4, v1"); a("v_add_u32 v2, s33, v2")
    set_exec(a, 0xfff, 0)
    a("ds_write_b128 v2, v[16:19] offset:3584")
    full_exec(a)
    a("s_waitcnt lgkmcnt(0)")
    for n in range(4):
        a(f"s_add_u32 m0, s33, {1024*n}")
        if n == 3: set_exec(a, 0xffffff, 0)
        a(f"global_load_lds_dwordx4 v{8+n}, {P_WO}")
    full_exec(a)
    a("v_lshrrev_b32 v3, 4, v1"); a("v_mul_u32_u24 v3, 6, v3"); a("v_bfe_u32 v4, v1, 2, 2")
    a("v_and_b32 v5, 3, v1"); a("v_lshlrev_b32 v5, 3, v5")
    a("v_add_u32 v6, v3, v4"); a("v_mul_u32_u24 v6, 144, v6"); a("v_add3_u32 v6, v6, v5, s33")
    a("v_add_u32 v7, 576, v6")
    a("s_add_u32 s35, s33, 3584"); a("v_add_u32 v12, s35, v5")
    a("v_cmp_gt_u32 vcc, 2, v4"); a("v_cndmask_b32 v7, v12, v7, vcc")
    a(f"s_mul_i32 s34, s31, {WOFG}"); a("s_mul_i32 s35, s30, 4608"); a("s_add_u32 s34, s34, s35"); a(f"s_add_u32 s34, s34, {WOF}")
    a("v_lshlrev_b32 v13, 4, v1"); a("v_add_u32 v13, s34, v13")
    a("v_lshrrev_b32 v14, 4, v1"); a("v_lshlrev_b32 v14, 3, v14"); a("v_and_b32 v15, 15, v1"); a("v_add_u32 v14, v14, v15")
    a("v_lshlrev_b32 v14, 4, v14"); a("s_add_u32 s34, s34, 4096"); a("v_add_u32 v14, s34, v14")
    a("s_waitcnt vmcnt(0)")
    for ct in range(5):
        r = 20 + 4*ct
        a(f"ds_read_b64_tr_b16 v[{r}:{r+1}], v6 offset:{32*ct}")
        a(f"ds_read_b64_tr_b16 v[{r+2}:{r+3}], v7 offset:{32*ct}")
    a("s_waitcnt lgkmcnt(0)")
    for ct in range(4):
        a(f"global_store_dwordx4 v13, v[{20+4*ct}:{23+4*ct}], {P_WS} offset:{1024*ct}")
    set_exec(a, 0x00ff00ff, 0x00ff00ff)
    a(f"global_store_dwordx4 v14, v[36:39], {P_WS}")
    full_exec(a)

def k0(a, name):
    prologue(a, K0_WGS, f"L_{name}_end")
    a(f"s_cmp_ge_u32 s2, {N_LN + N_W}"); a(f"s_cbranch_scc1 L_{name}_wo")
    a(f"s_cmp_ge_u32 s2, {N_LN}"); a(f"s_cbranch_scc1 L_{name}_w")
    ln_part(a)
    a(f"s_branch L_{name}_end")
    a(f"L_{name}_w:")
    w_part(a)
    a(f"s_branch L_{name}_end")
    a(f"L_{name}_wo:")
    wo_part(a)
    a(f"L_{name}_end:")
    a("s_endpgm")
```

```python
from common import *

L_W    = 0
L_IMG  = 129024
L_KVC  = 158848
L_RED  = 0
K1_LDS = 163840
ACC = 64
LOG2E = 0x3fb8aa3b

S_I, S_P, S_IDX, S_RSEL = "s29", "s30", "s31", "s32"

def tile_ids(a):
    a("s_and_b32 s33, s2, 7"); a("s_lshr_b32 s34, s2, 3")
    a("s_and_b32 s35, s33, 3"); a("s_lshl_b32 s35, s35, 2"); a("s_and_b32 s36, s34, 3"); a(f"s_add_u32 {S_I}, s35, s36")
    a("s_lshr_b32 s35, s33, 2"); a("s_lshl_b32 s35, s35, 3"); a("s_lshr_b32 s36, s34, 2"); a(f"s_add_u32 {S_P}, s35, s36")

def argmax_load(a, r0):
    a("v_lshlrev_b32 v2, 4, v1")
    for n in range(4):
        a(f"global_load_dwordx4 v[{r0+4*n}:{r0+4*n+3}], v2, s[40:41] offset:{1024*n}")

def argmax_reduce(a, r0, t):
    a(f"v_max3_u32 {t}, v{r0}, v{r0+1}, v{r0+2}")
    for n in range(3, 15, 2): a(f"v_max3_u32 {t}, {t}, v{r0+n}, v{r0+n+1}")
    a(f"v_max_u32 {t}, {t}, v{r0+15}")
    reduce64_max_u32(a, t, f"v{r0}")
    a(f"v_readfirstlane_b32 s33, {t}")
    a("s_and_b32 s34, s33, 0xffff"); a(f"s_sub_u32 {S_IDX}, 2047, s34")
    a("s_and_b32 s33, s33, 0xffff0000")
    a("s_ashr_i32 s34, s33, 31"); a("s_not_b32 s34, s34"); a("s_or_b32 s34, s34, 0x80000000")
    a("s_xor_b32 s33, s33, s34"); a(f"s_and_b32 {S_RSEL}, s33, 0xffff0000")

def softmax_pair(a, P, E, OUT, tmp):
    mx, mn, ap, an, sp, sn = tmp, tmp+1, tmp+2, tmp+4, tmp+6, tmp+8
    a(f"v_max3_f32 v{mx}, v{P}, v{P+1}, v{P+2}"); a(f"v_min3_f32 v{mn}, v{P}, v{P+1}, v{P+2}")
    for n in range(3, 17, 2):
        a(f"v_max3_f32 v{mx}, v{mx}, v{P+n}, v{P+n+1}"); a(f"v_min3_f32 v{mn}, v{mn}, v{P+n}, v{P+n+1}")
    a(f"v_max_f32 v{mx}, v{mx}, v{P+17}"); a(f"v_min_f32 v{mn}, v{mn}, v{P+17}")
    a(f"v_mul_f32 v{ap}, s44, v{mx}"); a(f"v_sub_f32 v{ap}, 0, v{ap}")
    a(f"v_mul_f32 v{an}, s44, v{mn}")
    for n in range(9):
        a(f"v_pk_fma_f32 v[{E+2*n}:{E+2*n+1}], v[{P+2*n}:{P+2*n+1}], s[44:45], v[{ap}:{ap+1}] op_sel_hi:[1,1,0]")
        a(f"v_pk_fma_f32 v[{E+18+2*n}:{E+19+2*n}], v[{P+2*n}:{P+2*n+1}], s[44:45], v[{an}:{an+1}] op_sel_hi:[1,1,0] neg_lo:[1,0,0] neg_hi:[1,0,0]")
    for n in range(36): a(f"v_exp_f32 v{E+n}, v{E+n}")
    a(f"v_pk_add_f32 v[{sp}:{sp+1}], v[{E}:{E+1}], v[{E+2}:{E+3}]")
    a(f"v_pk_add_f32 v[{sn}:{sn+1}], v[{E+18}:{E+19}], v[{E+20}:{E+21}]")
    for n in range(2, 9):
        a(f"v_pk_add_f32 v[{sp}:{sp+1}], v[{sp}:{sp+1}], v[{E+2*n}:{E+2*n+1}]")
        a(f"v_pk_add_f32 v[{sn}:{sn+1}], v[{sn}:{sn+1}], v[{E+18+2*n}:{E+19+2*n}]")
    a(f"v_add_f32 v{sp}, v{sp}, v{sp+1}"); a(f"v_add_f32 v{sn}, v{sn}, v{sn+1}")
    a(f"v_rcp_f32 v{sp}, v{sp}"); a(f"v_rcp_f32 v{sn}, v{sn}")
    for n in range(9):
        a(f"v_pk_mul_f32 v[{E+2*n}:{E+2*n+1}], v[{E+2*n}:{E+2*n+1}], v[{sp}:{sp+1}] op_sel_hi:[1,0]")
        a(f"v_pk_mul_f32 v[{E+18+2*n}:{E+19+2*n}], v[{E+18+2*n}:{E+19+2*n}], v[{sn}:{sn+1}] op_sel_hi:[1,0]")
    for n in range(18): a(f"v_cvt_pk_bf16_f32 v{OUT+n}, v{E+2*n}, v{E+2*n+1}")

def gemm_qkv(a):
    a(f"s_lshl_b32 s33, {S_I}, 2"); a("s_add_u32 s33, s33, s28"); a("s_mul_i32 s33, s33, 36864")
    a(f"s_add_u32 s33, s33, {XF}"); base64(a, "s[36:37]", P_WS, "s33")
    a(f"s_mul_i32 s33, {S_P}, {WFP}"); a(f"s_add_u32 s33, s33, {WF}"); base64(a, "s[38:39]", P_WS, "s33")
    a("s_mul_i32 s42, s28, 3584")
    a("v_lshlrev_b32 v2, 4, v1")
    a("v_add_u32 v3, s42, v2")
    def issue(c):
        a(f"s_add_u32 m0, s42, {14336*c}")
        a(f"v_add_u32 v4, {14336*c}, v3")
        for j in range(3): a(f"global_load_lds_dwordx4 v4, s[38:39] offset:{1024*j}")
        a("s_mov_b64 exec, 0xffffffff")
        a("global_load_lds_dwordx4 v4, s[38:39] offset:3072")
        full_exec(a)
        a(f"v_add_u32 v5, {4096*c}, v2")
        for j in range(4):
            s = 4*c + j
            a(f"global_load_dwordx4 a[{4*s}:{4*s+3}], v5, s[36:37] offset:{1024*j}")
    for c in range(7): issue(c)
    a("v_add_u32 v6, 64512, v2")
    a("v_and_b32 v7, 15, v1"); a("v_lshrrev_b32 v8, 5, v1"); a("v_lshlrev_b32 v8, 4, v8"); a("v_add_u32 v7, v7, v8")
    a("v_lshlrev_b32 v7, 4, v7"); a("v_add_u32 v7, 3072, v7"); a("v_add_u32 v8, 64512, v7")
    def reads(s):
        r = 128 + 16*(s % 2)
        lo = s < 18
        off = 3584 * (s if lo else s - 18)
        for T in range(3): a(f"ds_read_b128 v[{r+4*T}:{r+4*T+3}], {'v2' if lo else 'v6'} offset:{off + 1024*T}")
        a(f"ds_read_b128 v[{r+12}:{r+15}], {'v7' if lo else 'v8'} offset:{off}")
    def mfmas(s):
        r = 128 + 16*(s % 2)
        for T in range(4):
            c = "0" if s == 0 else f"v[{ACC+16*T}:{ACC+16*T+15}]"
            a(f"v_mfma_f32_32x32x16_bf16 v[{ACC+16*T}:{ACC+16*T+15}], v[{r+4*T}:{r+4*T+3}], a[{4*s}:{4*s+3}], {c}")
    a("s_waitcnt vmcnt(48)"); a("s_barrier")
    issue(7)
    reads(0)
    for s in range(36):
        c = s // 4
        if s % 4 == 3 and s < 35:
            a("s_waitcnt lgkmcnt(0)")
            mfmas(s)
            issued = min(9, 8 + c + 1) if c == 0 else 9
            have = 8 if c == 0 else 9
            a(f"s_waitcnt vmcnt({8*(have - (c + 2))})"); a("s_barrier")
            if c == 0: issue(8)
            reads(s+1)
        elif s < 35:
            reads(s+1)
            a("s_waitcnt lgkmcnt(4)")
            mfmas(s)
        else:
            a("s_waitcnt lgkmcnt(0)")
            mfmas(s)

def kv_partial(a, tag_reg):
    a(f"s_mov_b32 s44, {LOG2E:#x}"); a(f"s_mov_b32 s45, {LOG2E:#x}")
    softmax_pair(a, ACC+18, 128, 164, 184)
    for n in range(9): a(f"v_cvt_pk_bf16_f32 v{186+n}, v{ACC+36+2*n}, v{ACC+37+2*n}")
    a("v_mov_b32 v195, 0x3f80")
    a("v_and_b32 v2, 31, v1"); a("s_lshl_b32 s33, s28, 5"); a("v_add_u32 v2, s33, v2"); a("v_mul_u32_u24 v2, 232, v2")
    a("v_lshrrev_b32 v3, 5, v1"); a("v_mul_u32_u24 v4, 72, v3"); a("v_mul_u32_u24 v5, 40, v3")
    a(f"v_add3_u32 v4, v4, v2, {0}"); a(f"v_add_u32 v4, {L_IMG}, v4")
    a("v_add_u32 v5, v5, v2"); a(f"v_add_u32 v5, {L_IMG+144}, v5")
    for n in range(9): a(f"ds_write_b64 v4, v[{164+2*n}:{165+2*n}] offset:{8*n}")
    for n in range(5): a(f"ds_write_b64 v5, v[{186+2*n}:{187+2*n}] offset:{8*n}")
    a("v_lshrrev_b32 v2, 5, v1"); a("v_bfe_u32 v3, v1, 4, 1"); a("v_lshlrev_b32 v3, 4, v3"); a("v_bfe_u32 v6, v1, 2, 2"); a("v_lshlrev_b32 v6, 2, v6")
    a("v_add3_u32 v2, v2, v3, v6"); a("v_mul_u32_u24 v2, 232, v2"); a("v_and_b32 v3, 3, v1"); a("v_lshlrev_b32 v3, 3, v3"); a("v_add_u32 v2, v2, v3")
    a("s_lshr_b32 s33, s28, 1"); a("s_and_b32 s34, s28, 1")
    a("s_mul_i32 s35, s33, 72"); a(f"s_add_u32 s35, s35, {L_IMG}"); a("v_add_u32 v6, s35, v2")
    a("s_mul_i32 s35, s33, 40"); a("s_lshl_b32 s36, s34, 5"); a("s_add_u32 s35, s35, s36"); a(f"s_add_u32 s35, s35, {L_IMG+144}"); a("v_add_u32 v7, s35, v2")
    a("s_waitcnt lgkmcnt(0)"); a("s_barrier")
    def rd(ks):
        r = 128 + 16*(ks % 2)
        for ft in range(3):
            for q in range(2): a(f"ds_read_b64_tr_b16 v[{r+4*ft+2*q}:{r+4*ft+2*q+1}], v6 offset:{7424*ks + 464*q + 32*ft}")
        for q in range(2): a(f"ds_read_b64_tr_b16 v[{r+12+2*q}:{r+13+2*q}], v7 offset:{7424*ks + 464*q}")
    rd(0)
    for ks in range(4):
        if ks < 3: rd(ks+1); a("s_waitcnt lgkmcnt(8)")
        else: a("s_waitcnt lgkmcnt(0)")
        r = 128 + 16*(ks % 2)
        for ft in range(3):
            c = "0" if ks == 0 else f"v[{164+4*ft}:{167+4*ft}]"
            a(f"v_mfma_f32_16x16x32_bf16 v[{164+4*ft}:{167+4*ft}], v[{r+4*ft}:{r+4*ft+3}], v[{r+12}:{r+15}], {c}")
    a("v_and_b32 v2, 15, v1"); a("s_lshl_b32 s36, s34, 4"); a("v_add_u32 v2, s36, v2"); a("v_mul_u32_u24 v2, 72, v2")
    a("v_lshrrev_b32 v3, 4, v1"); a("v_lshlrev_b32 v3, 3, v3"); a("v_add_u32 v2, v2, v3")
    a("s_mul_i32 s35, s33, 1368"); a(f"s_add_u32 s35, s35, {L_KVC}"); a("v_add_u32 v2, s35, v2")
    a("s_cmp_eq_u32 s34, 0")
    a("s_cselect_b32 s46, -1, 0x00070007"); a("s_cselect_b32 s47, 0xffff, 7")
    for ft in range(3):
        a(f"v_cvt_pk_bf16_f32 v{180+2*ft}, v{164+4*ft}, v{165+4*ft}"); a(f"v_cvt_pk_bf16_f32 v{181+2*ft}, v{166+4*ft}, v{167+4*ft}")
    set_exec(a, "s46", "s46")
    for ft in range(2): a(f"ds_write_b64 v2, v[{180+2*ft}:{181+2*ft}] offset:{32*ft}")
    set_exec(a, "s47", 0)
    a("ds_write_b64 v2, v[184:185] offset:64")
    full_exec(a)
    a("s_waitcnt lgkmcnt(0)"); a("s_barrier")
    a("v_mul_u32_u24 v2, 12, v0"); a(f"v_add_u32 v2, {L_KVC}, v2")
    a(f"s_lshl_b32 s33, {S_P}, 4"); a(f"s_add_u32 s33, s33, {S_I}"); a(f"s_mul_i32 s33, s33, {KVPS}"); a(f"s_add_u32 s33, s33, {KVP}")
    a("v_lshlrev_b32 v3, 4, v0"); a("v_add_u32 v3, s33, v3")
    a("v_cmp_gt_u32 vcc, 228, v0"); a("s_and_saveexec_b64 s[46:47], vcc"); a("s_cbranch_execz L_kvp_skip")
    a("ds_read2_b32 v[180:181], v2 offset1:1"); a("ds_read_b32 v182, v2 offset:8"); a(f"v_mov_b32 v183, {tag_reg}")
    a("s_waitcnt lgkmcnt(0)")
    a(f"global_store_dwordx4 v3, v[180:183], {P_WS} sc1")
    a("L_kvp_skip:"); a("s_mov_b64 exec, s[46:47]")

def q_features(a, out):
    softmax_pair(a, ACC, 128, out, 184)
    a(f"v_mov_b32 v{out+18}, 0"); a(f"v_mov_b32 v{out+19}, 0")

def moe_a_loads(a, W0, X0):
    a(f"s_mul_hi_u32 s48, s2, {magic(3)}"); a("s_mul_i32 s49, s48, 3"); a("s_sub_u32 s49, s2, s49")
    a("v_lshrrev_b32 v2, 3, v1"); a("s_lshl_b32 s33, s28, 3"); a("s_mul_i32 s34, s49, 192"); a("s_add_u32 s33, s33, s34")
    a("v_add_u32 v3, s33, v2"); a("v_mul_u32_u24 v3, 9216, v3")
    a("v_and_b32 v4, 7, v1"); a("v_lshlrev_b32 v4, 4, v4"); a("s_lshl_b32 s33, s48, 7"); a("v_add3_u32 v3, v3, v4, s33")
    for i in range(6):
        if i: a(f"v_add_u32 v3, {32*9216}, v3")
        a(f"global_load_dwordx4 v[{W0+4*i}:{W0+4*i+3}], v3, {P_WG} nt")
        a(f"global_load_dwordx4 v[{W0+24+4*i}:{W0+24+4*i+3}], v3, {P_WU} nt")
    a(f"s_lshr_b32 s33, {S_IDX}, 5"); a("s_mul_i32 s33, s33, 36864"); a("s_mul_i32 s34, s49, 12288"); a("s_add_u32 s33, s33, s34")
    a("s_lshr_b32 s34, s28, 1"); a("s_lshl_b32 s34, s34, 10"); a("s_add_u32 s33, s33, s34")
    a(f"s_and_b32 s34, {S_IDX}, 31"); a("s_and_b32 s35, s28, 1"); a("s_lshl_b32 s35, s35, 5"); a("s_add_u32 s34, s34, s35"); a("s_lshl_b32 s34, s34, 4")
    a("s_add_u32 s33, s33, s34"); a(f"s_add_u32 s33, s33, {XF}")
    a("v_lshlrev_b32 v2, 1, v2"); a("v_add_u32 v2, s33, v2")
    for i in range(6): a(f"v_mov_b32 v{X0+2*i}, 0")
    for i in range(6):
        if i: a("v_add_u32 v2, 2048, v2")
        a(f"global_load_short_d16_hi v{X0+2*i}, v2, {P_WS}")

def gemv_rows(a, W, X, ACCR, nrows, first=True):
    for i in range(nrows):
        for d in range(4):
            a(f"v_lshlrev_b32 v8, 16, v{W+4*i+d}"); a(f"v_and_b32 v9, 0xffff0000, v{W+4*i+d}")
            if i == 0 and first:
                a(f"v_pk_mul_f32 v[{ACCR+2*d}:{ACCR+2*d+1}], v[8:9], v[{X}:{X+1}] op_sel_hi:[1,0]")
            else:
                a(f"v_pk_fma_f32 v[{ACCR+2*d}:{ACCR+2*d+1}], v[8:9], v[{X+2*i}:{X+2*i+1}], v[{ACCR+2*d}:{ACCR+2*d+1}] op_sel_hi:[1,0,1]")

def moe_a_compute(a, W0, X0, tag_reg):
    G = 200
    gemv_rows(a, W0, X0, G, 6); gemv_rows(a, W0+24, X0, G+8, 6)
    for n in range(16): a(f"v_add_f32_dpp v{G+n}, v{G+n}, v{G+n} row_ror:8 row_mask:0xf bank_mask:0xf")
    a("v_lshrrev_b32 v2, 4, v1"); a("s_lshl_b32 s33, s28, 2"); a("v_add_u32 v2, s33, v2"); a("v_lshlrev_b32 v2, 9, v2")
    a("v_and_b32 v3, 7, v1"); a("v_lshlrev_b32 v3, 6, v3"); a("v_add_u32 v2, v2, v3")
    for n in range(4): a(f"ds_write_b128 v2, v[{G+4*n}:{G+4*n+3}] offset:{L_RED + 16*n}")
    a("s_waitcnt lgkmcnt(0)"); a("s_barrier")
    a("s_cmp_lg_u32 s28, 0"); a("s_cbranch_scc1 L_moea_done")
    a("v_lshrrev_b32 v2, 3, v1"); a("v_lshlrev_b32 v2, 6, v2"); a("v_and_b32 v3, 7, v1"); a("v_lshlrev_b32 v3, 2, v3"); a("v_add_u32 v2, v2, v3")
    for q in range(16):
        a(f"ds_read_b32 v{128+q}, v2 offset:{L_RED + 512*q}"); a(f"ds_read_b32 v{144+q}, v2 offset:{L_RED + 512*q + 32}")
    a("s_waitcnt lgkmcnt(0)")
    for q in range(1, 16):
        a(f"v_add_f32 v128, v128, v{128+q}"); a(f"v_add_f32 v144, v144, v{144+q}")
    a("v_mov_b32 v129, v144"); a("v_mov_b32 v130, 0"); a(f"v_mov_b32 v131, {tag_reg}")
    a("s_lshl_b32 s33, s2, 10"); a(f"s_add_u32 s33, s33, {GU}"); a("v_lshlrev_b32 v2, 4, v1"); a("v_add_u32 v2, s33, v2")
    a(f"global_store_dwordx4 v2, v[128:131], {P_WS} sc1")
    a("L_moea_done:")

def k1(a, name):
    end = f"L_{name}_end"
    prologue(a, 256, end)
    tile_ids(a)
    a("s_waitcnt lgkmcnt(0)")
    base64(a, "s[40:41]", P_WS, CAND)
    a(f"s_mov_b32 s50, {TAG:#x}")
    argmax_load(a, 16)
    gemm_qkv(a)
    argmax_reduce(a, 16, "v32")
    a("s_barrier")
    W0, X0 = 8 + 0, 0
    W0 = 208; X0 = 16
    a("s_cmp_ge_u32 s2, 216"); a("s_cbranch_scc1 L_k1_nomoe0")
    moe_a_loads(a, W0, X0)
    a("L_k1_nomoe0:")
    kv_partial(a, "s50")
    q_features(a, 164)
    a("s_lshl_b32 s33, s2, 2"); a("s_add_u32 s33, s33, s28"); a("s_mul_i32 s33, s33, 5120"); a(f"s_add_u32 s33, s33, {PHIQ}")
    a("v_lshlrev_b32 v2, 4, v1"); a("v_add_u32 v2, s33, v2"); a("v_add_u32 v3, 4096, v2")
    for n in range(4): a(f"global_store_dwordx4 v2, v[{164+4*n}:{167+4*n}], {P_WS} offset:{1024*n}")
    a(f"global_store_dwordx4 v3, v[180:183], {P_WS}")
    a("s_cmp_ge_u32 s2, 216"); a(f"s_cbranch_scc1 {end}")
    a("s_waitcnt vmcnt(0)")
    moe_a_compute(a, W0, X0, "s50")
    a(f"{end}:")
    a("s_endpgm")
```

```python
from common import *
from k1 import tile_ids, argmax_load, argmax_reduce, gemv_rows, S_I, S_P, S_IDX, S_RSEL

L2_KVS  = 0
L2_ZERO = 3072
L2_H    = 3328
L2_RED  = 4352
K2_LDS  = 16384

def kv_gather_issue(a, G):
    a(f"s_mul_i32 s33, {S_P}, {16*KVPS}"); a(f"s_add_u32 s33, s33, {KVP}")
    a("v_min_u32 v2, 227, v0"); a("v_lshlrev_b32 v2, 4, v2"); a("v_add_u32 v2, s33, v2")
    for n in range(16):
        if n: a(f"v_add_u32 v2, {KVPS}, v2")
        a(f"global_load_dwordx4 v[{G+4*n}:{G+4*n+3}], v2, {P_WS} sc1")

def kv_sum_to_lds(a, G, kvs):
    a("s_mov_b32 s46, 0x00003f80"); a("s_mov_b32 s47, 0x3f800000")
    for d in range(6): a(f"v_mov_b32 v{8+d}, 0")
    for n in range(16):
        for d in range(3):
            a(f"v_dot2c_f32_bf16 v{8+2*d}, s46, v{G+4*n+d}"); a(f"v_dot2c_f32_bf16 v{9+2*d}, s47, v{G+4*n+d}")
    for d in range(3): a(f"v_cvt_pk_bf16_f32 v{8+d}, v{8+2*d}, v{9+2*d}")
    a(f"s_mov_b32 s33, {magic(6)}"); a("v_mul_hi_u32 v2, v0, s33"); a("v_mul_u32_u24 v3, 6, v2"); a("v_sub_u32 v3, v0, v3")
    a("v_mul_u32_u24 v2, 80, v2"); a("v_mul_u32_u24 v3, 12, v3"); a("v_add_u32 v2, v2, v3")
    a("v_cmp_gt_u32 vcc, 228, v0"); a("s_and_saveexec_b64 s[46:47], vcc"); a("s_cbranch_execz L_kvs_skip")
    for d in range(3): a(f"ds_write_b32 v2, v{8+d} offset:{kvs + 4*d}")
    a("L_kvs_skip:"); a("s_mov_b64 exec, s[46:47]")

def o_phase(a, PH, kvs, zero, tag_reg):
    a("v_and_b32 v2, 31, v1"); a("v_lshrrev_b32 v3, 5, v1")
    a("v_bfe_u32 v4, v2, 2, 1")
    a("v_lshrrev_b32 v5, 3, v2"); a("v_lshlrev_b32 v5, 2, v5"); a("v_and_b32 v6, 3, v2"); a("v_add_u32 v5, v5, v6")
    a("v_mul_u32_u24 v6, 19, v3"); a("v_add_u32 v6, v6, v5"); a("v_mul_u32_u24 v6, 80, v6"); a(f"v_add_u32 v6, {kvs}, v6")
    a(f"v_mov_b32 v7, {zero}")
    a("v_cmp_eq_u32 vcc, v3, v4"); a("v_cndmask_b32 v8, v7, v6, vcc")
    a("v_add_u32 v6, 1280, v6"); a("v_cndmask_b32 v9, v7, v6, vcc")
    a("v_cmp_gt_u32 vcc, 3, v5"); a("v_cndmask_b32 v9, v7, v9, vcc")
    for s in range(5):
        a(f"ds_read_b128 v[{128+8*s}:{131+8*s}], v8 offset:{16*s}"); a(f"ds_read_b128 v[{132+8*s}:{135+8*s}], v9 offset:{16*s}")
    a("s_waitcnt lgkmcnt(0)")
    for s in range(5):
        for T in range(2):
            c = "0" if s == 0 else f"v[{64+16*T}:{79+16*T}]"
            a(f"v_mfma_f32_32x32x16_bf16 v[{64+16*T}:{79+16*T}], v[{128+8*s+4*T}:{131+8*s+4*T}], v[{PH+4*s}:{PH+4*s+3}], {c}")
    a(f"s_lshl_b32 s33, {S_I}, 3"); a("s_lshl_b32 s34, s28, 1"); a("s_add_u32 s33, s33, s34"); a("s_mul_i32 s33, s33, 24576")
    a(f"s_mul_i32 s34, {S_P}, 1536"); a("s_add_u32 s33, s33, s34"); a(f"s_add_u32 s33, s33, {OF}")
    a("v_bfe_u32 v2, v1, 4, 1"); a("v_mul_u32_u24 v2, 24576, v2"); a("v_lshrrev_b32 v3, 5, v1"); a("v_mul_u32_u24 v3, 768, v3")
    a("v_and_b32 v4, 15, v1"); a("v_lshlrev_b32 v4, 4, v4"); a("v_add3_u32 v2, v2, v3, v4"); a("v_add_u32 v2, s33, v2")
    a("v_add_f32 v82, 0x358637bd, v82")
    a("v_rcp_f32 v82, v82")
    a("v_mov_b32 v84, v80"); a("v_mov_b32 v85, v81")
    for n in range(8): a(f"v_pk_mul_f32 v[{64+2*n}:{65+2*n}], v[{64+2*n}:{65+2*n}], v[82:83] op_sel_hi:[1,0]")
    a("v_pk_mul_f32 v[80:81], v[84:85], v[82:83] op_sel_hi:[1,0]")
    for n in range(9):
        a(f"v_cvt_pk_bf16_f32 v{128 + 4*(n//3) + n%3}, v{64+2*n}, v{65+2*n}")
    for j in range(3): a(f"v_mov_b32 v{131+4*j}, {tag_reg}")
    for j in range(3): a(f"global_store_dwordx4 v2, v[{128+4*j}:{131+4*j}], {P_WS} offset:{256*j} sc1")

def moe_b_loads(a, W0, G0):
    a(f"s_mul_hi_u32 s48, s2, {magic(9)}"); a("s_mul_i32 s49, s48, 9"); a("s_sub_u32 s49, s2, s49")
    a("v_lshrrev_b32 v2, 3, v1"); a("s_lshl_b32 s33, s28, 3"); a("s_mul_i32 s34, s48, 192"); a("s_add_u32 s33, s33, s34")
    a("v_add_u32 v3, s33, v2"); a("v_mul_u32_u24 v3, 1152, v3")
    a("v_and_b32 v4, 7, v1"); a("v_lshlrev_b32 v4, 4, v4"); a("s_lshl_b32 s33, s49, 7"); a("v_add3_u32 v3, v3, v4, s33")
    for i in range(6):
        if i: a(f"v_add_u32 v3, {32*1152}, v3")
        a(f"global_load_dwordx4 v[{W0+4*i}:{W0+4*i+3}], v3, {P_WD} nt")
    a("v_min_u32 v2, 191, v0"); a("v_lshrrev_b32 v3, 6, v2"); a("v_mul_u32_u24 v3, 3072, v3"); a("v_and_b32 v2, 63, v2"); a("v_lshlrev_b32 v2, 4, v2")
    a("s_mul_i32 s33, s48, 9216"); a(f"s_add_u32 s33, s33, {GU}"); a("v_add3_u32 v2, v2, v3, s33")
    for k in range(3): a(f"global_load_dwordx4 v[{G0+4*k}:{G0+4*k+3}], v2, {P_WS} offset:{1024*k} sc1")

def moe_b_compute(a, W0, G0, lh, lred, tag_reg):
    a(f"v_add_f32 v{G0}, v{G0}, v{G0+4}"); a(f"v_add_f32 v{G0+1}, v{G0+1}, v{G0+5}")
    a(f"v_add_f32 v{G0}, v{G0}, v{G0+8}"); a(f"v_add_f32 v{G0+1}, v{G0+1}, v{G0+9}")
    a(f"v_mul_f32 v{G0+2}, 0xbfb8aa3b, v{G0}"); a(f"v_exp_f32 v{G0+2}, v{G0+2}"); a(f"v_add_f32 v{G0+2}, 1.0, v{G0+2}")
    a(f"v_rcp_f32 v{G0+2}, v{G0+2}"); a(f"v_mul_f32 v{G0}, v{G0}, v{G0+2}"); a(f"v_mul_f32 v{G0}, v{G0}, v{G0+1}")
    a("v_lshlrev_b32 v2, 2, v0")
    a("v_cmp_gt_u32 vcc, 192, v0"); a("s_and_saveexec_b64 s[46:47], vcc"); a("s_cbranch_execz L_h_skip")
    a(f"ds_write_b32 v2, v{G0} offset:{lh}")
    a("L_h_skip:"); a("s_mov_b64 exec, s[46:47]")
    a("s_waitcnt lgkmcnt(0)"); a("s_barrier")
    X0 = G0
    a("v_lshrrev_b32 v2, 3, v1"); a("s_lshl_b32 s33, s28, 3"); a("v_add_u32 v2, s33, v2"); a("v_lshlrev_b32 v2, 2, v2")
    for i in range(6): a(f"ds_read_b32 v{X0+2*i}, v2 offset:{lh + 128*i}")
    a("s_waitcnt lgkmcnt(0)")
    Y = 40
    gemv_rows(a, W0, X0, Y, 6)
    for n in range(8): a(f"v_add_f32_dpp v{Y+n}, v{Y+n}, v{Y+n} row_ror:8 row_mask:0xf bank_mask:0xf")
    a("v_lshrrev_b32 v2, 4, v1"); a("s_lshl_b32 s33, s28, 2"); a("v_add_u32 v2, s33, v2"); a("v_lshlrev_b32 v2, 8, v2")
    a("v_and_b32 v3, 7, v1"); a("v_lshlrev_b32 v3, 5, v3"); a("v_add_u32 v2, v2, v3")
    for n in range(2): a(f"ds_write_b128 v2, v[{Y+4*n}:{Y+4*n+3}] offset:{lred + 16*n}")
    a("s_waitcnt lgkmcnt(0)"); a("s_barrier")
    a("s_cmp_lg_u32 s28, 0"); a("s_cbranch_scc1 L_moeb_done")
    a("v_and_b32 v2, 31, v1"); a("v_lshlrev_b32 v2, 3, v2")
    for q in range(16): a(f"ds_read_b64 v[{128+2*q}:{129+2*q}], v2 offset:{lred + 256*q}")
    a("s_waitcnt lgkmcnt(0)")
    for q in range(1, 16): a(f"v_pk_add_f32 v[128:129], v[128:129], v[{128+2*q}:{129+2*q}]")
    a("v_mov_b32 v130, 0"); a(f"v_mov_b32 v131, {tag_reg}")
    a("s_lshl_b32 s33, s2, 9"); a(f"s_add_u32 s33, s33, {YP}"); a("v_and_b32 v2, 31, v1"); a("v_lshlrev_b32 v2, 4, v2"); a("v_add_u32 v2, s33, v2")
    a("s_mov_b64 exec, 0xffffffff")
    a(f"global_store_dwordx4 v2, v[128:131], {P_WS} sc1")
    full_exec(a)
    a("L_moeb_done:")

def k2(a, name):
    end = f"L_{name}_end"
    prologue(a, 256, end)
    tile_ids(a)
    a("s_waitcnt lgkmcnt(0)")
    a(f"s_mov_b32 s50, {TAG:#x}")
    kv_gather_issue(a, 128)
    a("s_lshl_b32 s33, s2, 2"); a("s_add_u32 s33, s33, s28"); a("s_mul_i32 s33, s33, 5120"); a(f"s_add_u32 s33, s33, {PHIQ}")
    a("v_lshlrev_b32 v2, 4, v1"); a("v_add_u32 v2, s33, v2"); a("v_add_u32 v3, 4096, v2")
    for n in range(4): a(f"global_load_dwordx4 v[{192+4*n}:{195+4*n}], v2, {P_WS} offset:{1024*n}")
    a(f"global_load_dwordx4 v[208:211], v3, {P_WS}")
    a("s_cmp_ge_u32 s2, 216"); a("s_cbranch_scc1 L_k2_nomoe0")
    moe_b_loads(a, 216, 16)
    a("L_k2_nomoe0:")
    for r in range(4, 8): a(f"v_mov_b32 v{r}, 0")
    a("v_lshlrev_b32 v2, 4, v0")
    a("v_cmp_gt_u32 vcc, 200, v0"); a("s_and_saveexec_b64 s[46:47], vcc"); a("s_cbranch_execz L_k2_z")
    a("ds_write_b128 v2, v[4:7]")
    a("L_k2_z:"); a("s_mov_b64 exec, s[46:47]")
    a("s_waitcnt vmcnt(0) lgkmcnt(0)"); a("s_barrier")
    kv_sum_to_lds(a, 128, L2_KVS)
    a("s_waitcnt lgkmcnt(0)"); a("s_barrier")
    o_phase(a, 192, L2_KVS, L2_ZERO, "s50")
    a("s_cmp_ge_u32 s2, 216"); a(f"s_cbranch_scc1 {end}")
    moe_b_compute(a, 216, 16, L2_H, L2_RED, "s50")
    a(f"{end}:")
    a("s_endpgm")

L3_WO = 0
L3_YR = 110592
L3_YF = 112640
K3_LDS = 114688
S_J, S_C = "s29", "s30"

def p4_ids(a):
    a("s_and_b32 s33, s2, 7"); a("s_lshr_b32 s34, s2, 3")
    a("s_lshl_b32 s33, s33, 2"); a("s_lshr_b32 s35, s34, 3"); a(f"s_add_u32 {S_J}, s33, s35"); a(f"s_and_b32 {S_C}, s34, 7")

def wo_dma(a, lds):
    a(f"s_mul_i32 s33, {S_C}, {WOFG}"); a(f"s_add_u32 s33, s33, {WOF}"); base64(a, "s[38:39]", P_WS, "s33")
    a("s_mul_i32 s42, s28, 27648")
    a("v_lshlrev_b32 v2, 4, v1"); a("v_add_u32 v3, s42, v2")
    for q in range(7):
        a(f"s_add_u32 m0, s42, {lds + 4096*q}")
        if q: a("v_add_u32 v3, 4096, v3")
        for j in range(4 if q < 6 else 3): a(f"global_load_lds_dwordx4 v3, s[38:39] offset:{1024*j}")

def o_gather_issue(a, B0):
    a(f"s_lshl_b32 s33, {S_J}, 2"); a("s_add_u32 s33, s33, s28"); a("s_mul_i32 s33, s33, 24576"); a(f"s_add_u32 s33, s33, {OF}")
    a("v_lshlrev_b32 v2, 4, v1"); a("v_add_u32 v2, s33, v2")
    for q in range(6):
        if q: a("v_add_u32 v2, 4096, v2")
        for j in range(4):
            s = 4*q + j
            a(f"global_load_dwordx4 v[{B0+4*s}:{B0+4*s+3}], v2, {P_WS} offset:{1024*j} sc1")

def resid_loads(a, X0):
    a("v_and_b32 v2, 15, v1"); a(f"s_lshl_b32 s33, {S_J}, 6"); a("s_lshl_b32 s34, s28, 4"); a("s_add_u32 s33, s33, s34"); a("v_add_u32 v10, s33, v2")
    a("v_mul_u32_u24 v11, 1152, v10"); a("v_lshrrev_b32 v3, 4, v1"); a("v_lshlrev_b32 v3, 3, v3")
    a(f"s_mul_i32 s33, {S_C}, 144"); a("v_add3_u32 v11, v11, v3, s33")
    for ct in range(4): a(f"global_load_dwordx2 v[{X0+2*ct}:{X0+2*ct+1}], v11, {P_X} offset:{32*ct}")
    a("s_mov_b64 exec, 0xffffffff")
    a(f"global_load_dwordx2 v[{X0+8}:{X0+9}], v11, {P_X} offset:128")
    full_exec(a)
    a("v_lshlrev_b32 v2, 3, v10"); a(f"v_add_u32 v2, {STATS}, v2")
    a(f"global_load_dwordx2 v[12:13], v2, {P_WS}")

def y_gather_issue(a, Y0):
    a(f"s_mov_b32 s33, {magic(36)}"); a("v_min_u32 v2, 215, v0"); a("v_mul_hi_u32 v3, v2, s33"); a("v_mul_u32_u24 v4, 36, v3"); a("v_sub_u32 v4, v2, v4")
    a(f"s_mul_i32 s33, {S_C}, 36"); a("v_add_u32 v4, s33, v4")
    a("v_lshrrev_b32 v5, 5, v4"); a("v_and_b32 v4, 31, v4")
    a("v_mul_u32_u24 v3, 9, v3"); a("v_add_u32 v3, v3, v5"); a("v_lshlrev_b32 v3, 9, v3"); a("v_lshlrev_b32 v4, 4, v4")
    a("v_add_u32 v3, v3, v4"); a(f"v_add_u32 v3, {YP}, v3")
    for n in range(4):
        if n: a(f"v_add_u32 v3, {54*512}, v3")
        a(f"global_load_dwordx4 v[{Y0+4*n}:{Y0+4*n+3}], v3, {P_WS} sc1")

def y_finish(a, Y0, yr, yf):
    a(f"v_pk_add_f32 v[{Y0}:{Y0+1}], v[{Y0}:{Y0+1}], v[{Y0+4}:{Y0+5}]"); a(f"v_pk_add_f32 v[{Y0+8}:{Y0+9}], v[{Y0+8}:{Y0+9}], v[{Y0+12}:{Y0+13}]")
    a(f"v_pk_add_f32 v[{Y0}:{Y0+1}], v[{Y0}:{Y0+1}], v[{Y0+8}:{Y0+9}]")
    a("v_lshlrev_b32 v2, 3, v0"); a(f"v_add_u32 v2, {yr}, v2")
    a("v_cmp_gt_u32 vcc, 216, v0"); a("s_and_saveexec_b64 s[46:47], vcc"); a("s_cbranch_execz L_yr_skip")
    a(f"ds_write_b64 v2, v[{Y0}:{Y0+1}]")
    a("L_yr_skip:"); a("s_mov_b64 exec, s[46:47]")
    a("s_waitcnt lgkmcnt(0)"); a("s_barrier")
    a("v_min_u32 v2, 71, v0"); a("v_lshlrev_b32 v2, 2, v2"); a(f"v_add_u32 v2, {yr}, v2")
    for n in range(6): a(f"ds_read_b32 v{Y0+n}, v2 offset:{288*n}")
    a("s_waitcnt lgkmcnt(0)")
    for n in range(1, 6): a(f"v_add_f32 v{Y0}, v{Y0}, v{Y0+n}")
    a(f"v_mov_b32 v3, {S_RSEL}"); a("v_mul_f32 v3, 0xbfb8aa3b, v3"); a("v_exp_f32 v3, v3"); a("v_add_f32 v3, 1.0, v3"); a("v_rcp_f32 v3, v3")
    a(f"v_mul_f32 v{Y0}, v{Y0}, v3")
    a(f"ds_write_b32 v2, v{Y0} offset:{yf - yr}")
    a("s_waitcnt lgkmcnt(0)"); a("s_barrier")

def p4_gemm(a, B0, lds):
    A = 120; C = 100
    a("v_lshlrev_b32 v2, 4, v1"); a(f"v_add_u32 v2, {lds}, v2"); a("v_add_u32 v3, 55296, v2")
    a("v_lshrrev_b32 v4, 4, v1"); a("v_lshlrev_b32 v4, 3, v4"); a("v_and_b32 v5, 7, v1"); a("v_add_u32 v4, v4, v5")
    a("v_lshlrev_b32 v4, 4, v4"); a(f"v_add_u32 v4, {lds + 4096}, v4"); a("v_add_u32 v5, 55296, v4")
    def reads(s):
        r = A + 20*(s % 2); lo = s < 12; off = 4608*(s if lo else s - 12)
        for ct in range(4): a(f"ds_read_b128 v[{r+4*ct}:{r+4*ct+3}], {'v2' if lo else 'v3'} offset:{off + 1024*ct}")
        a(f"ds_read_b128 v[{r+16}:{r+19}], {'v4' if lo else 'v5'} offset:{off}")
    reads(0)
    for s in range(24):
        if s < 23: reads(s+1); a("s_waitcnt lgkmcnt(5)")
        else: a("s_waitcnt lgkmcnt(0)")
        r = A + 20*(s % 2)
        for ct in range(5):
            c = "0" if s == 0 else f"v[{C+4*ct}:{C+4*ct+3}]"
            a(f"v_mfma_f32_16x16x32_bf16 v[{C+4*ct}:{C+4*ct+3}], v[{r+4*ct}:{r+4*ct+3}], {B0(s)}, {c}")

def p4_epilogue(a, X0, yf, own_label):
    C = 100
    a("v_mul_f32 v14, v12, v13"); a("v_sub_f32 v14, 0, v14"); a("v_add_f32 v16, 1.0, v13")
    for ct in range(5):
        for d in range(2):
            a(f"v_lshlrev_b32 v8, 16, v{X0+2*ct+d}"); a(f"v_and_b32 v9, 0xffff0000, v{X0+2*ct+d}")
            a(f"v_pk_fma_f32 v[8:9], v[8:9], v[16:17], v[14:15] op_sel_hi:[1,0,0]")
            a(f"v_pk_add_f32 v[{C+4*ct+2*d}:{C+4*ct+2*d+1}], v[{C+4*ct+2*d}:{C+4*ct+2*d+1}], v[8:9]")
    a(f"s_lshr_b32 s33, {S_IDX}, 6"); a(f"s_cmp_lg_u32 s33, {S_J}"); a(f"s_cbranch_scc1 {own_label}")
    a("v_lshrrev_b32 v2, 4, v1"); a("v_lshlrev_b32 v2, 4, v2"); a(f"v_add_u32 v2, {yf}, v2")
    for ct in range(5): a(f"ds_read_b128 v[{128+4*ct}:{131+4*ct}], v2 offset:{64*ct}")
    a(f"v_cmp_eq_u32 vcc, {S_IDX}, v10"); a("v_cndmask_b32 v16, 0, 1.0, vcc")
    a("s_waitcnt lgkmcnt(0)")
    for ct in range(5):
        for d in range(2):
            a(f"v_pk_fma_f32 v[{C+4*ct+2*d}:{C+4*ct+2*d+1}], v[{128+4*ct+2*d}:{129+4*ct+2*d}], v[16:17], v[{C+4*ct+2*d}:{C+4*ct+2*d+1}] op_sel_hi:[1,0,1]")
    a(f"{own_label}:")
    for ct in range(5):
        for d in range(2): a(f"v_cvt_pk_bf16_f32 v{128+2*ct+d}, v{C+4*ct+2*d}, v{C+4*ct+2*d+1}")
    for ct in range(4): a(f"global_store_dwordx2 v11, v[{128+2*ct}:{129+2*ct}], {P_OUT} offset:{32*ct}")
    a("s_mov_b64 exec, 0xffffffff")
    a(f"global_store_dwordx2 v11, v[136:137], {P_OUT} offset:128")
    full_exec(a)

def k3(a, name):
    end = f"L_{name}_end"
    prologue(a, 256, end)
    p4_ids(a)
    a("s_waitcnt lgkmcnt(0)")
    base64(a, "s[40:41]", P_WS, CAND)
    argmax_load(a, 16)
    wo_dma(a, L3_WO)
    o_gather_issue(a, 160)
    resid_loads(a, 32)
    a("s_waitcnt vmcnt(0)")
    argmax_reduce(a, 16, "v44")
    a(f"s_lshr_b32 s33, {S_IDX}, 6"); a(f"s_cmp_lg_u32 s33, {S_J}"); a("s_cbranch_scc1 L_k3_noy")
    y_gather_issue(a, 48)
    a("s_waitcnt vmcnt(0)")
    y_finish(a, 48, L3_YR, L3_YF)
    a("L_k3_noy:")
    a("s_barrier")
    p4_gemm(a, lambda s: f"v[{160+4*s}:{163+4*s}]", L3_WO)
    p4_epilogue(a, 32, L3_YF, "L_k3_own")
    a(f"{end}:")
    a("s_endpgm")
```

```python
S, D, H, DH, F = 2048, 576, 32, 18, 4608
XF    = 0x0000000
WF    = 0x0240000
WFP   = 36 * 3584
WOF   = 0x0440000
WOFG  = 24 * 4608
STATS = 0x0520000
CAND  = 0x0524000
PHIQ  = 0x0530000
GR    = 0x0B00000
KVP   = GR
KVPS  = 3712
OF    = GR + 0xE8000
GU    = GR + 0x3E8000
YP    = GR + 0x41E000
GR_END = GR + 0x439000
TAG   = 0x3C5A3C5A

P_X, P_WQKV, P_PHI, P_WO, P_BX, P_WR, P_WG, P_WU = "s[4:5]", "s[6:7]", "s[8:9]", "s[10:11]", "s[12:13]", "s[14:15]", "s[16:17]", "s[18:19]"
P_WD, P_OUT, P_DBG, P_WS = "s[20:21]", "s[22:23]", "s[24:25]", "s[26:27]"

def magic(d):
    return (2**32 + d - 1) // d
```

```python
import sys
sys.path.insert(0, "gen")
from common import *
import k0, k1, k23

REF = open("parallel_sum__linear_kernel_hedgehog__moe_arch_mod__prompt.s.ref").read()
HEAD = REF[:REF.index("; Override launch geometry")]

def kernel(name, fn):
    a = Asm(); fn(a, name)
    return f".globl {name}\n.p2align 8\n.type {name},@function\n{name}:\n" + a.finalize()

def build(path, upto=4):
    ks = [("prep_kernel", k0.k0, k0.K0_WGS, k0.K0_LDS, 128, 128),
          ("qkv_kernel", k1.k1, 256, k1.K1_LDS, 400, 256),
          ("omoe_kernel", k23.k2, 256, k23.K2_LDS, 256, 256),
          ("outp_kernel", k23.k3, 256, k23.K3_LDS, 256, 256)][:upto]
    t = HEAD
    for n, fn, g, lds, vg, acc in ks: t += f"; @launch kernel={n} grid=({g},1,1) block=(256,1,1) lds={lds}\n"
    t += '.amdgcn_target "amdgcn-amd-amdhsa--gfx950"\n.text\n'
    for n, fn, g, lds, vg, acc in ks: t += kernel(n, fn)
    for n, fn, g, lds, vg, acc in ks: t += KD.format(name=n, vgpr=vg, sgpr=96, acc=acc)
    open(path, "w").write(t)

if __name__ == "__main__":
    build(sys.argv[1], int(sys.argv[2]) if len(sys.argv) > 2 else 4)
```
